```python
import torch

def _softmax(x, axis=-1):
    return torch.softmax(x, dim=axis)
def _gelu(x):
    return torch.nn.functional.gelu(x, approximate="tanh")
def _silu(x):
    return torch.nn.functional.silu(x)
def _sigmoid(x):
    return torch.sigmoid(x)
def _layernorm(x, axis=-1, eps=1e-5):
    m = x.mean(dim=axis, keepdim=True)
    v = x.var(dim=axis, keepdim=True, unbiased=False)
    return (x - m) / torch.sqrt(v + eps)
def _scatter_add(tgt, idx, src, axis=0):
    return tgt.clone().index_add_(axis, idx, src)
def _segment_sum(src, seg, n):
    out = torch.zeros((n,) + src.shape[1:], dtype=src.dtype)
    return out.index_add_(0, seg, src)
def _pad(x, pw):
    flat = tuple(v for pair in reversed(pw) for v in pair)
    return torch.nn.functional.pad(x, flat)

kernel_name = 'standalone__linear_attn_block__prompt'

def setup_inputs():

    _w = (lambda a: (lambda t: t.to(torch.bfloat16) if t.is_floating_point() else t)(torch.as_tensor(a)))
    B, S, D = 1, 2048, 576
    return {
        "x": _w((lambda *s: torch.randn(*s, dtype=torch.bfloat16) * 0.05)(B, S, D)),
        "wqkv": _w((lambda *s: torch.randn(*s, dtype=torch.bfloat16) * 0.4)(D, 3 * D)),
        "wo": _w((lambda *s: torch.randn(*s, dtype=torch.bfloat16) * 0.05)(D, D)),
    }

def reference(x, wqkv, wo):
    B, S, D = x.shape
    H = 32; Dh = D // H
    qkv = (lambda x, *d: x.permute(*d))((x @ wqkv).reshape(B, S, 3, H, Dh), 2, 0, 3, 1, 4)
    q, k, v = qkv[0], qkv[1], qkv[2]
    phi = lambda t: torch.where(t > 0, t + 1, torch.exp(t)) + 1e-6
    pq, pk = phi(q), phi(k)
    kv = torch.einsum("bhsd,bhse->bhde", pk, v)
    z = torch.einsum("bhsd->bhd", pk)
    num = torch.einsum("bhqd,bhde->bhqe", pq, kv)
    den = torch.einsum("bhqd,bhd->bhq", pq, z)[..., None] + 1e-6
    o = num / den
    return (lambda x, *d: x.permute(*d))(o, 0, 2, 1, 3).reshape(B, S, D) @ wo
```

```python
class Asm:
    def __init__(self):
        self.lines = []
        self._lab = 0
    def __call__(self, s):
        for l in s.strip("\n").split("\n"):
            self.lines.append(l if l.endswith(":") or l.startswith(";") or l.startswith(".") else "  " + l.strip())
    def c(self, s):
        self.lines.append("  ; " + s)
    def label(self, name):
        self.lines.append(name + ":")
    def newlabel(self, base):
        self._lab += 1
        return f"L_{base}_{self._lab}"
    def nop(self, n):
        while n > 0:
            k = min(n, 16)
            self.lines.append(f"  s_nop {k-1}")
            n -= k
    def text(self):
        return "\n".join(self.lines) + "\n"

def vr(base, n=1):
    return f"v{base}" if n == 1 else f"v[{base}:{base+n-1}]"
def sr(base, n=1):
    return f"s{base}" if n == 1 else f"s[{base}:{base+n-1}]"

def desc(name, vgpr=256, sgpr=96, accum=None):
    if accum is None:
        accum = min(256, (vgpr + 3) // 4 * 4)
    return f""".section .rodata,"a"
.p2align 6
.amdhsa_kernel {name}
  .amdhsa_next_free_vgpr {vgpr}
  .amdhsa_next_free_sgpr {sgpr}
  .amdhsa_accum_offset {accum}
  .amdhsa_group_segment_fixed_size 0
  .amdhsa_kernarg_size 48
  .amdhsa_user_sgpr_count 2
  .amdhsa_user_sgpr_kernarg_segment_ptr 1
  .amdhsa_system_sgpr_workgroup_id_x 1
  .amdhsa_float_denorm_mode_32 3
.end_amdhsa_kernel
"""
def head(name):
    return f""".globl {name}
.p2align 8
.type {name},@function
{name}:
"""
TARGET = '.amdgcn_target "amdgcn-amd-amdhsa--gfx950"\n.text\n'
```

```python
import sys
from asmlib import *

NAME = "standalone__linear_attn_block__prompt_kernel"
XROW, WROW, OROW = 1152, 3456, 1152
XB, XSLOT = 0, 16384
WB, WSLOT = 49152, 11264
WQB, WQU = 113152, 5632
WOB = 0
RB = 92160
TB = 104448
LDS_BYTES = 163840
EPOCH_OFF = 0
PFA_OFF = 0x1000
PFB_OFF = 0x1400
PART_OFF = 0x10000
OBUF_OFF = 0x100000
DUMP_OFF = 0x800000
STAMP_OFF = 0x4000000
OOB = 0x40000000
POLL_MAX = 1 << 18

SX, SW, SWO, SOUT, SWS = 16, 20, 24, 28, 32
sMT, sJ, sJQ, sWAVE, sC0, sTAG, sEPOCH, sSH, sSHQ = 36, 37, 38, 39, 40, 41, 42, 43, 44
sT = 46
sLOG2E, sEPS = 62, 64
sCNT = 66
sEX = 68
sST = 70

def srd(a, dst, lo, size):
    a(f"""
s_mov_b32 s{dst}, s{lo}
s_and_b32 s{dst+1}, s{lo+1}, 0xffff
s_mov_b32 s{dst+2}, {size}
s_mov_b32 s{dst+3}, 0x00020000
""")

class K:
    def __init__(self, dump=None, stamps=False):
        self.a = Asm()
        self.dump = dump
        self.stamps = stamps
        self.nstamp = {}

    def stamp(self, role, idx):
        if self.stamps:
            r = sST + 2 * idx
            self.a(f"s_memrealtime s[{r}:{r+1}]")

    def stamp_flush(self, n):
        if not self.stamps:
            return
        a = self.a
        a("s_waitcnt lgkmcnt(0)")
        a(f"s_lshl_b32 s{sT}, s2, 3\ns_add_u32 s{sT}, s{sT}, s{sWAVE}\ns_lshl_b32 s{sT}, s{sT}, 7\ns_add_u32 s{sT}, s{sT}, {STAMP_OFF}")
        a("s_mov_b64 exec, 1")
        a(f"v_mov_b32 v3, 0")
        for i in range(n):
            a(f"v_mov_b32 v2, s{sST+2*i}")
            a(f"buffer_store_dword v2, v3, s[{SWS}:{SWS+3}], s{sT} offen offset:{4*i}")
            a("s_nop 1")
        a("s_waitcnt vmcnt(0)")
        a("s_mov_b64 exec, -1")

    def prologue(self):
        a = self.a
        a(f"""
s_cmp_ge_u32 s2, 256
s_cbranch_scc1 L_end
s_load_dwordx4 s[4:7], s[0:1], 0
s_load_dwordx4 s[8:11], s[0:1], 16
s_load_dwordx4 s[12:15], s[0:1], 32
""")
        self.stamp('all', 0)
        a(f"""
s_and_b32 s{sT}, s2, 7
s_lshr_b32 s{sT+1}, s2, 3
s_and_b32 s{sT+2}, s{sT+1}, 3
s_lshr_b32 s{sT+3}, s{sT+1}, 2
s_lshr_b32 s{sMT}, s{sT}, 1
s_lshl_b32 s{sMT}, s{sMT}, 2
s_add_u32 s{sMT}, s{sMT}, s{sT+2}
s_and_b32 s{sJ}, s{sT}, 1
s_lshl_b32 s{sJ}, s{sJ}, 3
s_add_u32 s{sJ}, s{sJ}, s{sT+3}
s_xor_b32 s{sJQ}, s{sJ}, 1
s_lshl_b32 s{sC0}, s{sT+2}, 1
s_add_u32 s{sC0}, s{sC0}, s{sT+3}
s_cmp_ge_u32 s{sC0}, 9
s_cselect_b32 s{sT}, 9, 0
s_sub_u32 s{sC0}, s{sC0}, s{sT}
s_cmp_eq_u32 s{sJ}, 15
s_cselect_b32 s{sSH}, 8, 0
s_cmp_eq_u32 s{sJQ}, 15
s_cselect_b32 s{sSHQ}, 8, 0
v_lshrrev_b32 v2, 6, v0
v_and_b32 v1, 63, v0
v_readfirstlane_b32 s{sWAVE}, v2
s_mov_b32 s{sLOG2E}, 0x3fb8aa3b
s_mov_b32 s{sLOG2E+1}, 0x3fb8aa3b
s_mov_b32 s{sEPS}, 0x358637bd
s_mov_b32 s{sEPS+1}, 0x358637bd
s_nop 1
s_cmp_eq_u32 s{sWAVE}, 4
s_cbranch_scc1 L_loader0
s_cmp_eq_u32 s{sWAVE}, 5
s_cbranch_scc1 L_loader1
s_cmp_eq_u32 s{sWAVE}, 6
s_cbranch_scc1 L_loader2
s_cmp_eq_u32 s{sWAVE}, 7
s_cbranch_scc1 L_loader3
""")

    def build_srds(self, which):
        a = self.a
        if 'x' in which: srd(a, SX, 4, 2048 * XROW)
        if 'w' in which: srd(a, SW, 6, 576 * WROW)
        if 'o' in which: srd(a, SWO, 8, 576 * OROW)
        if 'u' in which: srd(a, SOUT, 10, 2048 * 1152)
        if 's' in which: srd(a, SWS, 14, 0x10000000)

    def loader(self, wp):
        a = self.a
        a.label(f"L_loader{wp}")
        vXE, vXO = 4, 5
        vKV = [6, 7, 8]
        vQ = [9, 10, 11]
        nW = 3 if wp < 3 else 2
        a(f"""
v_lshrrev_b32 v2, 3, v1
v_mul_u32_u24 v2, {XROW}, v2
v_and_b32 v3, 7, v1
v_lshrrev_b32 v12, 4, v1
v_xor_b32 v3, v3, v12
v_lshlrev_b32 v3, 4, v3
v_add_u32 v{vXE}, v2, v3
v_xor_b32 v{vXO}, 64, v{vXE}
v_mov_b32 v20, {OOB}
""")
        for m in range(nW):
            sig0 = 64 * (wp + 4 * m)
            a(f"""
v_add_u32 v12, {sig0}, v1
v_mul_u32_u24 v13, 745, v12
v_lshrrev_b32 v13, 16, v13          ; b
v_mul_u32_u24 v14, 88, v13
v_sub_u32 v14, v12, v14             ; pos
v_mul_u32_u24 v15, 6554, v14
v_lshrrev_b32 v15, 16, v15          ; rr
v_mul_u32_u24 v16, 10, v15
v_sub_u32 v16, v14, v16             ; ch
v_cmp_le_u32 vcc, 5, v16
v_lshlrev_b32 v17, 3, v13
v_add_u32 v17, v17, v15
v_cndmask_b32 v18, 0, 1, vcc        ; seg
v_mul_u32_u24 v19, 5, v18
v_sub_u32 v16, v16, v19             ; cc
v_lshlrev_b32 v16, 4, v16           ; cc*16
v_mul_u32_u24 v17, {WROW}, v17
v_mul_u32_u24 v19, 1152, v18
v_add3_u32 v17, v17, v19, v16
v_add_u32 v17, 1152, v17
v_cmp_gt_u32 vcc, 80, v14
v_lshrrev_b32 v19, 2, v13           ; b>>2
v_and_b32 v21, 3, v13               ; b&3
v_cndmask_b32 v{vKV[m]}, v20, v17, vcc
v_lshlrev_b32 v19, 6, v19
v_lshlrev_b32 v21, 3, v21
v_lshlrev_b32 v18, 5, v18
v_add3_u32 v19, v19, v21, v18
v_add_u32 v19, v19, v15             ; krow
v_mul_u32_u24 v19, {WROW}, v19
v_add_u32 v19, v19, v16
v_cndmask_b32 v{vQ[m]}, v20, v19, vcc
""")
        a("s_waitcnt lgkmcnt(0)")
        self.build_srds('xws' + ('o' if wp == 3 else ''))
        sXb, sWb, sC = sT + 8, sT + 9, sT + 10
        a(f"""
s_mul_i32 s{sXb}, s{sMT}, {128*XROW}
s_add_u32 s{sXb}, s{sXb}, {wp*4*8*XROW}
s_mul_i32 s{sWb}, s{sJ}, 72
s_sub_u32 s{sWb}, s{sWb}, s{sSH}
s_mov_b32 s{sC}, s{sC0}
""")
        def issue(i):
            slot = i % 3
            a(f"""
s_lshl_b32 s{sT}, s{sC}, 7
s_add_u32 s{sT}, s{sT}, s{sXb}
s_mul_i32 s{sT+1}, s{sC}, {64*WROW}
s_add_u32 s{sT+1}, s{sT+1}, s{sWb}
""")
            for m in range(4):
                q = 4 * wp + m
                a(f"s_mov_b32 m0, {XB + slot*XSLOT + q*1024}")
                if m:
                    a(f"s_add_u32 s{sT+2}, s{sT}, {m*8*XROW}")
                    so = sT + 2
                else:
                    a("s_nop 0")
                    so = sT
                a(f"buffer_load_dwordx4 v{vXE if m % 2 == 0 else vXO}, s[{SX}:{SX+3}], s{so} offen lds")
            for m in range(nW):
                i11 = wp + 4 * m
                a(f"s_mov_b32 m0, {WB + slot*WSLOT + i11*1024}\ns_nop 0")
                a(f"buffer_load_dwordx4 v{vKV[m]}, s[{SW}:{SW+3}], s{sT+1} offen lds")
            a(f"""
s_add_u32 s{sC}, s{sC}, 1
s_cmp_eq_u32 s{sC}, 9
s_cselect_b32 s{sC}, 0, s{sC}
""")
            return 4 + nW
        def issue_q():
            cnt = 0
            a(f"s_mul_i32 s{sT}, s{sJQ}, 72\ns_sub_u32 s{sT}, s{sT}, s{sSHQ}")
            for p in range(5):
                for m in range(nW):
                    i11 = wp + 4 * m
                    if p == 4 and i11 > 5:
                        continue
                    a(f"s_mov_b32 m0, {WQB + p*WSLOT + i11*1024}")
                    if p == 4 and i11 == 5:
                        a("s_mov_b32 exec_lo, -1\ns_mov_b32 exec_hi, 0")
                    else:
                        a("s_nop 0")
                    a(f"buffer_load_dwordx4 v{vQ[m]}, s[{SW}:{SW+3}], s{sT} offen lds")
                    if p == 4 and i11 == 5:
                        a("s_mov_b64 exec, -1")
                    cnt += 1
                if p < 4:
                    a(f"s_add_u32 s{sT}, s{sT}, {128*WROW}")
            return cnt
        n = issue(0)
        issue(1)
        self.stamp('L', 1)
        nq = 0
        for i in range(9):
            if i < 7:
                a(f"s_waitcnt vmcnt({n})")
            elif i == 7:
                a(f"s_waitcnt vmcnt({n + nq})")
            else:
                a(f"s_waitcnt vmcnt({nq})")
            if i == 0: self.stamp('L', 2)
            a("s_barrier")
            if i + 2 <= 8:
                issue(i + 2)
            if i == 6:
                nq = issue_q()
        self.stamp('L', 3)
        a(f"""
v_mov_b32 v12, 0
v_mov_b32 v13, 0
v_mov_b32 v14, 0
v_mov_b32 v15, 0
v_lshlrev_b32 v16, 4, v1
v_add_u32 v16, {TB + wp*1024}, v16
ds_write_b128 v16, v[12:15]
""")
        if wp < 3:
            a(f"""
s_lshl_b32 s{sT}, s{sJQ}, 6
s_add_u32 s{sT}, s{sT}, {PFA_OFF}
v_lshlrev_b32 v22, 2, v1
v_and_b32 v22, 63, v22
buffer_load_dword v23, v22, s[{SWS}:{SWS+3}], s{sT} offen sc1
""")
            self.table_addrs(wp)
        a("s_waitcnt vmcnt(0) lgkmcnt(0)")
        a("s_barrier")
        self.stamp('L', 4)
        if wp < 3:
            self.partial_publish(wp)
            self.stamp('L', 5)
            self.partial_gather(wp)
            self.stamp('L', 7)
            a("s_waitcnt lgkmcnt(0)")
            a("s_barrier")
            a("s_barrier")
        else:
            self.wo_dma()
            a("s_barrier")
            a("s_waitcnt vmcnt(0)")
            self.stamp('L', 5)
            a("s_barrier")
        self.stamp_flush(8)
        a("s_endpgm")

    def table_addrs(self, wp):
        a = self.a
        DUM = TB + 3200
        a(f"""
v_add_u32 v24, {wp*64}, v1            ; G
v_mov_b32 v27, {DUM}
v_cmp_le_u32 vcc, 90, v24
v_subrev_u32 v28, 90, v24
s_nop 0
v_cndmask_b32 v28, v24, v28, vcc      ; G' = G or G-90
v_cndmask_b32 v29, 0, 1, vcc
v_mul_u32_u24 v30, 13108, v28
v_lshrrev_b32 v30, 16, v30            ; e' = G'/5
v_mul_u32_u24 v31, 5, v30
v_sub_u32 v31, v28, v31               ; q' = G'%5
v_mul_u32_u24 v32, 18, v29
v_add_u32 v30, v30, v32               ; row e
v_lshlrev_b32 v32, 2, v29
v_add_u32 v31, v31, v32               ; q
; z override
v_cmp_le_u32 vcc, 180, v24
v_subrev_u32 v32, 180, v24            ; q for z
s_nop 0
v_cndmask_b32 v31, v31, v32, vcc      ; q
v_cmp_le_u32 s[{sT}:{sT+1}], 5, v31   ; q>=5
v_mov_b32 v33, 36
v_mov_b32 v34, 37
s_nop 0
v_cndmask_b32 v33, v33, v34, s[{sT}:{sT+1}]
v_cndmask_b32 v30, v30, v33, vcc      ; row
v_cndmask_b32 v35, 0, 1, vcc          ; isZ
; pos = q<8 ? (q&3)*16 + (q>>2)*8 : 64
v_and_b32 v32, 3, v31
v_lshlrev_b32 v32, 4, v32
v_lshrrev_b32 v33, 2, v31
v_lshlrev_b32 v33, 3, v33
v_add_u32 v32, v32, v33
v_cmp_eq_u32 vcc, 8, v31
v_mul_u32_u24 v30, 80, v30
s_nop 0
v_cndmask_b32 v32, v32, 64, vcc
v_add3_u32 v25, v30, v32, 0
v_add_u32 v25, {TB}, v25
v_add_u32 v26, 4, v25
v_cmp_eq_u32 vcc, 4, v31
v_cmp_eq_u32 s[{sT}:{sT+1}], 1, v35   ; isZ
v_cmp_eq_u32 s[{sT+2}:{sT+3}], 1, v29
s_nop 0
s_and_b64 s[{sT+4}:{sT+5}], vcc, s[{sT}:{sT+1}]        ; q==4 & z
s_andn2_b64 s[{sT+6}:{sT+7}], vcc, s[{sT}:{sT+1}]      ; q==4 & !z
s_and_b64 s[{sT}:{sT+1}], s[{sT+6}:{sT+7}], s[{sT+2}:{sT+3}]
s_andn2_b64 s[{sT+2}:{sT+3}], s[{sT+6}:{sT+7}], s[{sT+2}:{sT+3}]
v_add_u32 v32, 80, v26
v_cndmask_b32 v25, v25, v27, s[{sT}:{sT+1}]
v_cndmask_b32 v26, v26, v27, s[{sT+2}:{sT+3}]
v_cndmask_b32 v26, v26, v32, s[{sT+4}:{sT+5}]
""")

    def partial_publish(self, wp):
        a = self.a
        a(f"""
v_lshlrev_b32 v28, 4, v24             ; G*16
v_add_u32 v29, {RB}, v28
ds_read_b128 v[32:35], v29
ds_read_b128 v[36:39], v29 offset:3072
ds_read_b128 v[40:43], v29 offset:6144
ds_read_b128 v[44:47], v29 offset:9216
s_lshl_b32 s{sT}, s{sJ}, 4
s_add_u32 s{sT}, s{sT}, s{sMT}
s_mul_i32 s{sT}, s{sT}, 3072
s_add_u32 s{sT}, s{sT}, {PART_OFF}
v_cmp_gt_u32 vcc, 189, v24
s_waitcnt lgkmcnt(0)
v_pk_add_f32 v[32:33], v[32:33], v[36:37]
v_pk_add_f32 v[34:35], v[34:35], v[38:39]
v_pk_add_f32 v[40:41], v[40:41], v[44:45]
v_pk_add_f32 v[42:43], v[42:43], v[46:47]
v_pk_add_f32 v[32:33], v[32:33], v[40:41]
v_pk_add_f32 v[34:35], v[34:35], v[42:43]
v_min_u32 v32, -2, v32
v_min_u32 v33, -2, v33
v_min_u32 v34, -2, v34
v_min_u32 v35, -2, v35
s_and_saveexec_b64 s[{sEX}:{sEX+1}], vcc
buffer_store_dwordx4 v[32:35], v28, s[{SWS}:{SWS+3}], s{sT} offen sc1
s_mov_b64 exec, s[{sEX}:{sEX+1}]
""")

    def partial_gather(self, wp):
        a = self.a
        lf = a.newlabel("pf"); lfd = a.newlabel("pfd")
        a(f"""
s_load_dword s{sEPOCH}, s[14:15], {EPOCH_OFF}
s_waitcnt lgkmcnt(0)
s_add_u32 s{sTAG}, s{sEPOCH}, 1
s_mul_i32 s{sTAG}, s{sTAG}, 0x9E3779B1
s_mov_b32 s{sCNT}, 0
s_lshl_b32 s{sT}, s{sJQ}, 6
s_add_u32 s{sT}, s{sT}, {PFA_OFF}
{lf}:
v_cmp_ne_u32 vcc, s{sTAG}, v23
s_cbranch_vccz {lfd}
s_add_u32 s{sCNT}, s{sCNT}, 1
s_cmp_gt_u32 s{sCNT}, {POLL_MAX}
s_cbranch_scc1 {lfd}
buffer_load_dword v23, v22, s[{SWS}:{SWS+3}], s{sT} offen sc1
s_waitcnt vmcnt(0)
s_branch {lf}
{lfd}:
""")
        lp = a.newlabel("pp"); lpd = a.newlabel("ppd")
        a(f"""
s_lshl_b32 s{sT}, s{sJQ}, 4
s_mul_i32 s{sT}, s{sT}, 3072
s_add_u32 s{sT}, s{sT}, {PART_OFF}
s_mov_b32 s{sCNT}, 0
v_cmp_gt_u32 vcc, 189, v24
s_and_saveexec_b64 s[{sEX}:{sEX+1}], vcc
{lp}:
s_mov_b32 s{sT+1}, s{sT}
""")
        for m in range(16):
            a(f"buffer_load_dwordx4 v[{64+4*m}:{67+4*m}], v28, s[{SWS}:{SWS+3}], s{sT+1} offen sc1")
            if m < 15:
                a(f"s_add_u32 s{sT+1}, s{sT+1}, 3072")
        a("s_waitcnt vmcnt(0)")
        a("v_max3_u32 v30, v64, v65, v66")
        for k in range(67, 127, 2):
            a(f"v_max3_u32 v30, v30, v{k}, v{k+1}")
        a("v_max_u32 v30, v30, v127")
        a(f"""
v_cmp_eq_u32 vcc, -1, v30
s_cbranch_vccz {lpd}
s_add_u32 s{sCNT}, s{sCNT}, 1
s_cmp_gt_u32 s{sCNT}, {POLL_MAX}
s_cbranch_scc1 {lpd}
s_sleep 2
s_branch {lp}
{lpd}:
""")
        self.stamp('L', 6)
        step = 1
        while step < 16:
            for m in range(0, 16, 2 * step):
                d = 64 + 4 * m; s = 64 + 4 * (m + step)
                a(f"v_pk_add_f32 v[{d}:{d+1}], v[{d}:{d+1}], v[{s}:{s+1}]")
                a(f"v_pk_add_f32 v[{d+2}:{d+3}], v[{d+2}:{d+3}], v[{s+2}:{s+3}]")
            step *= 2
        a(f"""
v_cvt_pk_bf16_f32 v30, v64, v65
v_cvt_pk_bf16_f32 v31, v66, v67
ds_write_b32 v25, v30
ds_write_b32 v26, v31
s_mov_b64 exec, s[{sEX}:{sEX+1}]
""")

    def wo_dma(self):
        a = self.a
        for p in range(5):
            a(f"""
v_add_u32 v12, {64*p}, v1
v_mul_u32_u24 v13, 6554, v12
v_lshrrev_b32 v13, 16, v13
v_mul_u32_u24 v14, 10, v13
v_sub_u32 v14, v12, v14
v_mul_u32_u24 v13, {OROW}, v13
v_lshlrev_b32 v15, 4, v14
v_add_u32 v13, v13, v15
v_cmp_gt_u32 vcc, 9, v14
s_nop 1
v_cndmask_b32 v{24+p}, v20, v13, vcc
""")
        a(f"""
s_lshr_b32 s{sT}, s{sJ}, 1
s_mul_i32 s{sT}, s{sT}, 144
""")
        lab = a.newlabel("wo")
        a(f"""
s_mov_b32 s{sT+1}, {WOB}
s_mov_b32 s{sCNT}, 0
{lab}:
""")
        for p in range(5):
            a(f"s_add_u32 m0, s{sT+1}, {p*1024}\ns_nop 0")
            a(f"buffer_load_dwordx4 v{24+p}, s[{SWO}:{SWO+3}], s{sT} offen lds")
        a(f"""
s_add_u32 s{sT}, s{sT}, {32*OROW}
s_add_u32 s{sT+1}, s{sT+1}, 5120
s_add_u32 s{sCNT}, s{sCNT}, 1
s_cmp_lt_u32 s{sCNT}, 18
s_cbranch_scc1 {lab}
""")

    ACC = 16
    BP, BQ = 56, 76
    vXA0, vXA1, vW0, vW2, vW3 = 96, 97, 98, 99, 100
    vG = 101
    vQA = 109
    vON = 110
    XF = 112

    def xf(self, i, k, tp):
        return self.XF + (i * 4 + k * 2 + tp) * 4

    def acc(self, tp, t):
        return self.ACC + (tp * 5 + t) * 4

    def compute(self):
        a = self.a
        a.label("L_compute")
        a(f"""
v_and_b32 v2, 15, v1                  ; m = l&15
v_lshrrev_b32 v3, 4, v1               ; g
v_lshrrev_b32 v4, 1, v2               ; swz
v_xor_b32 v4, v3, v4
v_lshlrev_b32 v4, 4, v4
v_lshlrev_b32 v5, 7, v2
s_lshl_b32 s{sT}, s{sWAVE}, 12
v_add3_u32 v{self.vXA0}, v4, v5, s{sT}
v_xor_b32 v{self.vXA1}, 64, v{self.vXA0}
v_lshrrev_b32 v6, 2, v2               ; r
v_and_b32 v7, 3, v1                   ; c4
v_mul_u32_u24 v8, 1408, v3
v_mul_u32_u24 v9, 160, v6
v_add_u32 v8, v8, v9                  ; g*1408 + r*160
v_lshlrev_b32 v9, 3, v7               ; 8*c4
v_add_u32 v10, v8, v9                 ; + 8 c4
s_add_u32 s{sT}, s{sSH}, {WB}
v_add_u32 v{self.vW0}, s{sT}, v10
v_add_u32 v{self.vW3}, {80+24}, v{self.vW0}
v_add_u32 v11, {80-8}, v{self.vW0}    ; c4>=1 : 80+sh+8(c4-1)
v_add_u32 v12, 64, v{self.vW0}        ; c4==0 : sh+64
v_cmp_eq_u32 vcc, 0, v7
s_add_u32 s{sT}, s{sSHQ}, {WQB}
v_add_u32 v{self.vQA}, s{sT}, v10
v_cndmask_b32 v{self.vW2}, v11, v12, vcc
""")
        DUMG = 190
        a(f"""
s_mul_i32 s{sT}, s{sWAVE}, 3072
s_add_u32 s{sT}, s{sT}, {RB}
v_mov_b32 v13, {DUMG*16}
v_add_u32 v13, s{sT}, v13
v_lshlrev_b32 v14, 4, v3              ; g*16
v_add_u32 v14, s{sT}, v14             ; base + g*16
v_mul_u32_u24 v15, 80, v2             ; col*5*16
""")
        g = self.vG
        a(f"""
v_add_u32 v5, v14, v15
v_subrev_u32 v6, 320, v5
v_cmp_le_u32 vcc, 4, v2               ; col>=4
v_cmp_eq_u32 s[{sT+2}:{sT+3}], 0, v3  ; g==0
s_nop 0
v_cndmask_b32 v{g+0}, v13, v6, vcc                 ; (0,2)
s_and_b64 s[{sT+4}:{sT+5}], vcc, s[{sT+2}:{sT+3}]
v_add_u32 v6, 64, v6
v_cndmask_b32 v{g+3}, v13, v6, s[{sT+4}:{sT+5}]
v_add_u32 v6, 960, v5
v_cmp_gt_u32 vcc, 6, v2               ; col<6
s_nop 1
v_cndmask_b32 v{g+1}, v13, v6, vcc                 ; (0,3)
s_and_b64 s[{sT+4}:{sT+5}], vcc, s[{sT+2}:{sT+3}]  ; col<6 & g==0
v_add_u32 v7, 64, v6
v_cndmask_b32 v8, v13, v7, s[{sT+4}:{sT+5}]
v_cndmask_b32 v{g+4}, v6, v8, vcc
v_add_u32 v7, 64, v6
s_andn2_b64 s[{sT+4}:{sT+5}], s[{sT+2}:{sT+3}], vcc ; g==0 & col>=6
s_nop 0
v_cndmask_b32 v{g+6}, v13, v7, s[{sT+4}:{sT+5}]    ; (2,3)
v_add_u32 v6, {80*28-64}, v5
v_add_u32 v7, {180*16}, v14           ; z tk=0
v_cmp_eq_u32 vcc, 8, v2               ; z
v_cmp_gt_u32 s[{sT+4}:{sT+5}], 8, v2  ; col<8
s_nop 0
v_cndmask_b32 v{g+2}, v13, v7, vcc                 ; (0,4) only z
v_add_u32 v6, 64, v6
v_add_u32 v7, 64, v7
v_cndmask_b32 v8, v13, v6, s[{sT+4}:{sT+5}]
v_cndmask_b32 v{g+5}, v8, v7, vcc                  ; (1,4)
v_add_u32 v6, 64, v6
v_add_u32 v7, 64, v7
v_cndmask_b32 v8, v13, v6, s[{sT+4}:{sT+5}]
v_cndmask_b32 v8, v8, v7, vcc
v_cndmask_b32 v{g+7}, v13, v8, s[{sT+2}:{sT+3}]    ; (2,4) g==0 only
""")
        for r in range(self.ACC, self.ACC + 40):
            a(f"v_mov_b32 v{r}, 0")
        a("s_waitcnt lgkmcnt(0)")
        self.build_srds('us')
        a(f"s_load_dword s{sEPOCH}, s[14:15], {EPOCH_OFF}")
        a(f"""
v_mov_b32 v4, -1
v_mov_b32 v5, -1
v_mov_b32 v6, -1
v_mov_b32 v7, -1
v_lshlrev_b32 v8, 4, v1               ; l*16
s_lshl_b32 s{sT}, s{sMT}, 3
s_lshl_b32 s{sT+1}, s{sWAVE}, 1
s_add_u32 s{sT}, s{sT}, s{sT+1}       ; T1 = mt*8 + 2w
s_mul_i32 s{sT}, s{sT}, 18432
s_add_u32 s{sT}, s{sT}, {OBUF_OFF}
s_lshl_b32 s{sT+1}, s{sJQ}, 10
s_add_u32 s{sT+1}, s{sT+1}, s{sT}     ; + jq*1024
s_mov_b32 s58, s{sT+1}
buffer_store_dwordx4 v[4:7], v8, s[{SWS}:{SWS+3}], s{sT+1} offen sc1
s_add_u32 s{sT+1}, s{sT+1}, 18432
buffer_store_dwordx4 v[4:7], v8, s[{SWS}:{SWS+3}], s{sT+1} offen sc1
s_lshr_b32 s{sT+1}, s{sJQ}, 3
s_add_u32 s{sT+1}, s{sT+1}, 16
s_lshl_b32 s{sT+1}, s{sT+1}, 10
s_add_u32 s{sT+1}, s{sT+1}, s{sT}
s_and_b32 s{sT+2}, s{sJQ}, 7
s_lshr_b32 s{sT+3}, s{sT+2}, 1
s_lshl_b32 s{sT+3}, s{sT+3}, 8        ; g'*256
s_and_b32 s{sT+2}, s{sT+2}, 1
s_lshl_b32 s{sT+2}, s{sT+2}, 3        ; half'*8
s_add_u32 s{sT+1}, s{sT+1}, s{sT+3}
s_add_u32 s{sT+1}, s{sT+1}, s{sT+2}
s_mov_b32 s59, s{sT+1}
s_mov_b64 exec, 0xffff
buffer_store_dwordx2 v[4:5], v8, s[{SWS}:{SWS+3}], s{sT+1} offen sc1
s_add_u32 s{sT+1}, s{sT+1}, 18432
buffer_store_dwordx2 v[4:5], v8, s[{SWS}:{SWS+3}], s{sT+1} offen sc1
s_mov_b64 exec, -1
s_lshl_b32 s{sT}, s{sJ}, 4
s_add_u32 s{sT}, s{sT}, s{sMT}
s_mul_i32 s{sT}, s{sT}, 3072
s_add_u32 s{sT}, s{sT}, {PART_OFF}
s_lshl_b32 s{sT+1}, s{sWAVE}, 10
s_add_u32 s{sT}, s{sT}, s{sT+1}
s_cmp_eq_u32 s{sWAVE}, 3
s_cbranch_scc1 L_nopp
buffer_store_dwordx4 v[4:7], v8, s[{SWS}:{SWS+3}], s{sT} offen sc1
L_nopp:
s_waitcnt vmcnt(0) lgkmcnt(0)
s_add_u32 s{sTAG}, s{sEPOCH}, 1
s_mul_i32 s{sTAG}, s{sTAG}, 0x9E3779B1
""")
        self.stamp('C', 1)
        a("s_barrier")
        a(f"""
s_cmp_lg_u32 s{sWAVE}, 0
s_cbranch_scc1 L_noflag
s_lshl_b32 s{sT}, s{sJ}, 4
s_add_u32 s{sT}, s{sT}, s{sMT}
s_lshl_b32 s{sT}, s{sT}, 2
s_add_u32 s{sT}, s{sT}, {PFA_OFF}
s_lshl_b32 s{sT+1}, s{sMT}, 4
s_add_u32 s{sT+1}, s{sT+1}, s{sJ}
s_lshl_b32 s{sT+1}, s{sT+1}, 2
s_add_u32 s{sT+1}, s{sT+1}, {PFB_OFF}
v_mov_b32 v4, s{sTAG}
v_mov_b32 v5, 0
s_mov_b64 exec, 1
buffer_store_dword v4, v5, s[{SWS}:{SWS+3}], s{sT} offen sc1
buffer_store_dword v4, v5, s[{SWS}:{SWS+3}], s{sT+1} offen sc1
s_mov_b64 exec, -1
L_noflag:
""")
        self.stamp('C', 2)
        def reads(i, k, buf):
            slot = i % 3
            xa = self.vXA0 if k == 0 else self.vXA1
            r = []
            for tp in range(2):
                x = self.xf(i, k, tp)
                r.append(f"ds_read_b128 v[{x}:{x+3}], v{xa} offset:{XB + slot*XSLOT + tp*2048}")
            for t in range(5):
                reg, extra = {0: (self.vW0, 0), 1: (self.vW0, 32), 2: (self.vW2, 0), 3: (self.vW3, 0), 4: (self.vW3, 32)}[t]
                for hf in range(2):
                    b = buf + 4 * t + 2 * hf
                    r.append(f"ds_read_b64_tr_b16 v[{b}:{b+1}], v{reg} offset:{slot*WSLOT + k*5632 + hf*640 + extra}")
            return r
        def block(i, k, buf, nxt):
            nxt = list(nxt)
            for t in range(5):
                for tp in range(2):
                    c = self.acc(tp, t); x = self.xf(i, k, tp); b = buf + 4 * t
                    a(f"v_mfma_f32_16x16x32_bf16 v[{c}:{c+3}], v[{x}:{x+3}], v[{b}:{b+3}], v[{c}:{c+3}]")
                    for _ in range(2):
                        if nxt: a(nxt.pop(0))
            for r in nxt: a(r)
        for r in reads(0, 0, self.BP): a(r)
        for i in range(9):
            a("s_waitcnt lgkmcnt(0)")
            block(i, 0, self.BP, reads(i, 1, self.BQ))
            a("s_waitcnt lgkmcnt(0)")
            if i < 8:
                a("s_barrier")
                block(i, 1, self.BQ, reads(i + 1, 0, self.BP))
            else:
                block(i, 1, self.BQ, [])
        self.stamp('C', 3)
        a.nop(10)
        if self.dump == 'acc1':
            self.dump_regs(self.ACC, 40, DUMP_OFF)
        PK = [56, 60, 64]
        VV = {2: 68, 3: 72, 4: 76}
        T0 = 80
        for tv in (2, 3, 4):
            for tp in range(2):
                c = self.acc(tp, tv); d = VV[tv] + 2 * tp
                a(f"v_cvt_pk_bf16_f32 v{d}, v{c}, v{c+1}")
                a(f"v_cvt_pk_bf16_f32 v{d+1}, v{c+2}, v{c+3}")
        a(f"""
v_and_b32 v2, 15, v1
v_cmp_eq_u32 vcc, 8, v2
v_mov_b32 v3, 0x3f803f80
s_nop 0
""")
        for r in range(4):
            a(f"v_cndmask_b32 v{VV[4]+r}, v{VV[4]+r}, v3, vcc")
        for tk in range(3):
            for tp in range(2):
                self.phi4(self.acc(tp, tk), PK[tk] + 2 * tp, T0)
        prods = [(0, 2), (0, 3), (0, 4), (1, 2), (1, 3), (1, 4), (2, 3), (2, 4)]
        DK = 16
        a.nop(2)
        for n, (tk, tv) in enumerate(prods):
            d = DK + 4 * n
            a(f"v_mfma_f32_16x16x32_bf16 v[{d}:{d+3}], v[{PK[tk]}:{PK[tk]+3}], v[{VV[tv]}:{VV[tv]+3}], 0")
        a.nop(8)
        for n in range(8):
            d = DK + 4 * n
            a(f"ds_write_b128 v{self.vG+n}, v[{d}:{d+3}]")
        a("s_waitcnt lgkmcnt(0)")
        self.stamp('C', 4)
        a("s_barrier")
        a(f"""
s_lshl_b32 s{sT}, s{sMT}, 6
s_add_u32 s57, s{sT}, {PFB_OFF}
v_lshlrev_b32 v14, 2, v1
v_and_b32 v14, 63, v14
buffer_load_dword v15, v14, s[{SWS}:{SWS+3}], s57 offen sc1
""")
        AQ = 16
        for r in range(AQ, AQ + 24):
            a(f"v_mov_b32 v{r}, 0")
        sU = sT + 10
        a(f"s_mov_b32 s{sU}, s{sC0}")
        QP, QQ = 56, 68
        def qreads(k, buf):
            r = []
            for u in range(3):
                for hf in range(2):
                    b = buf + 4 * u + 2 * hf
                    r.append(f"ds_read_b64_tr_b16 v[{b}:{b+1}], v{self.vON} offset:{80*k + 640*hf + 32*u}")
            return r
        def qaddr():
            a(f"s_mul_i32 s{sT}, s{sU}, {WQU}")
            a(f"v_add_u32 v{self.vON}, s{sT}, v{self.vQA}")
            a(f"s_add_u32 s{sU}, s{sU}, 1\ns_cmp_eq_u32 s{sU}, 9\ns_cselect_b32 s{sU}, 0, s{sU}")
        def qblock(i, k, buf, nxt):
            nxt = list(nxt)
            for u in range(3):
                for sp in range(2):
                    c = AQ + (u * 2 + sp) * 4; x = self.xf(i, k, sp); b = buf + 4 * u
                    a(f"v_mfma_f32_16x16x32_bf16 v[{c}:{c+3}], v[{b}:{b+3}], v[{x}:{x+3}], v[{c}:{c+3}]")
                    if nxt: a(nxt.pop(0))
            for r in nxt: a(r)
        qaddr()
        for r in qreads(0, QP): a(r)
        for i in range(9):
            a("s_waitcnt lgkmcnt(0)")
            qblock(i, 0, QP, qreads(1, QQ))
            a("s_waitcnt lgkmcnt(0)")
            if i < 8:
                qaddr()
                qblock(i, 1, QQ, qreads(0, QP))
            else:
                qblock(i, 1, QQ, [])
        a.nop(10)
        self.stamp('C', 5)
        if self.dump == 'accq':
            self.dump_regs(AQ, 24, DUMP_OFF)
        B0 = [40, 44]; B1 = [48, 52]
        for sp in range(2):
            self.phi4(AQ + (0 * 2 + sp) * 4, B0[sp], 80)
            self.phi4(AQ + (1 * 2 + sp) * 4, B0[sp] + 2, 80)
            self.phi4(AQ + (2 * 2 + sp) * 4, B1[sp], 80)
        a(f"v_cmp_gt_u32 vcc, 16, v1")
        for sp in range(2):
            a(f"v_mov_b32 v{B1[sp]+2}, 0\nv_mov_b32 v{B1[sp]+3}, 0")
        for sp in range(2):
            a(f"v_cndmask_b32 v{B1[sp]}, 0, v{B1[sp]}, vcc\nv_cndmask_b32 v{B1[sp]+1}, 0, v{B1[sp]+1}, vcc")
        a(f"""
v_and_b32 v2, 15, v1
v_lshrrev_b32 v3, 4, v1
v_mul_u32_u24 v4, 80, v2
v_lshlrev_b32 v5, 4, v3
v_add_u32 v4, v4, v5
v_add_u32 v4, {TB}, v4                ; base0
v_and_b32 v6, 1, v2
v_mul_u32_u24 v6, 80, v6
v_add_u32 v6, v6, v5
v_add_u32 v6, {TB + 36*80}, v6        ; baseD
""")
        lf = a.newlabel("of"); lfd = a.newlabel("ofd")
        a(f"""
s_waitcnt vmcnt(0)
s_mov_b32 s{sCNT}, 0
s_mov_b64 exec, 0xffff
{lf}:
v_cmp_ne_u32 vcc, s{sTAG}, v15
s_cbranch_vccz {lfd}
s_add_u32 s{sCNT}, s{sCNT}, 1
s_cmp_gt_u32 s{sCNT}, {POLL_MAX}
s_cbranch_scc1 {lfd}
buffer_load_dword v15, v14, s[{SWS}:{SWS+3}], s57 offen sc1
s_waitcnt vmcnt(0)
s_branch {lf}
{lfd}:
s_mov_b64 exec, -1
""")
        self.stamp('C', 6)
        a("s_barrier")
        TA = 56
        a(f"""
ds_read_b128 v[{TA}:{TA+3}], v4
ds_read_b128 v[{TA+4}:{TA+7}], v4 offset:1280
ds_read_b128 v[{TA+8}:{TA+11}], v4 offset:{1280+64}
ds_read_b128 v[{TA+12}:{TA+15}], v4 offset:2560
ds_read_b128 v[{TA+16}:{TA+19}], v4 offset:{2560+64}
ds_read_b128 v[{TA+20}:{TA+23}], v6
ds_read_b128 v[{TA+24}:{TA+27}], v6 offset:64
s_waitcnt lgkmcnt(0)
""")
        N = 16
        for sp in range(2):
            n = N + 16 * sp
            b0, b1 = B0[sp], B1[sp]
        NB = [84, 112]
        for sp in range(2):
            n = NB[1] + 16 * sp
            b0, b1 = B0[sp], B1[sp]
            a(f"v_mfma_f32_16x16x32_bf16 v[{n}:{n+3}], v[{TA}:{TA+3}], v[{b0}:{b0+3}], 0")
            a(f"v_mfma_f32_16x16x32_bf16 v[{n+4}:{n+7}], v[{TA+4}:{TA+7}], v[{b0}:{b0+3}], 0")
            a(f"v_mfma_f32_16x16x32_bf16 v[{n+8}:{n+11}], v[{TA+12}:{TA+15}], v[{b0}:{b0+3}], 0")
            a(f"v_mfma_f32_16x16x32_bf16 v[{n+12}:{n+15}], v[{TA+20}:{TA+23}], v[{b0}:{b0+3}], 0")
            a(f"v_mfma_f32_16x16x32_bf16 v[{n+4}:{n+7}], v[{TA+8}:{TA+11}], v[{b1}:{b1+3}], v[{n+4}:{n+7}]")
            a(f"v_mfma_f32_16x16x32_bf16 v[{n+8}:{n+11}], v[{TA+16}:{TA+19}], v[{b1}:{b1+3}], v[{n+8}:{n+11}]")
            a(f"v_mfma_f32_16x16x32_bf16 v[{n+12}:{n+15}], v[{TA+24}:{TA+27}], v[{b1}:{b1+3}], v[{n+12}:{n+15}]")
        a.nop(10)
        a(f"v_lshlrev_b32 v8, 4, v1")
        a(f"v_cmp_gt_u32 vcc, 16, v1")
        for sp in range(2):
            n = NB[1] + 16 * sp
            o = 144 + 8 * sp
            a(f"""
v_add_f32 v{n+12}, 0x358637bd, v{n+12}
v_add_f32 v{n+13}, 0x358637bd, v{n+13}
v_rcp_f32 v{n+12}, v{n+12}
v_rcp_f32 v{n+13}, v{n+13}
s_nop 0
v_cndmask_b32 v{n+14}, v{n+13}, v{n+12}, vcc
v_mul_f32 v{n+0}, v{n+0}, v{n+12}
v_mul_f32 v{n+1}, v{n+1}, v{n+12}
v_mul_f32 v{n+2}, v{n+2}, v{n+12}
v_mul_f32 v{n+3}, v{n+3}, v{n+12}
v_mul_f32 v{n+4}, v{n+4}, v{n+14}
v_mul_f32 v{n+5}, v{n+5}, v{n+14}
v_mul_f32 v{n+6}, v{n+6}, v{n+13}
v_mul_f32 v{n+7}, v{n+7}, v{n+13}
v_mul_f32 v{n+8}, v{n+8}, v{n+13}
v_mul_f32 v{n+9}, v{n+9}, v{n+13}
v_mul_f32 v{n+10}, v{n+10}, v{n+13}
v_mul_f32 v{n+11}, v{n+11}, v{n+13}
v_cvt_pk_bf16_f32 v{o+0}, v{n+0}, v{n+1}
v_cvt_pk_bf16_f32 v{o+1}, v{n+2}, v{n+3}
v_cvt_pk_bf16_f32 v{o+2}, v{n+4}, v{n+5}
v_cvt_pk_bf16_f32 v{o+3}, v{n+6}, v{n+7}
v_cvt_pk_bf16_f32 v{o+4}, v{n+8}, v{n+9}
v_cvt_pk_bf16_f32 v{o+5}, v{n+10}, v{n+11}
""")
            for r in range(6):
                a(f"v_min_u32 v{o+r}, -2, v{o+r}")
            if sp == 0:
                a(f"s_mov_b32 s{sT}, s58\ns_mov_b32 s{sT+1}, s59")
            else:
                a(f"s_add_u32 s{sT}, s58, 18432\ns_add_u32 s{sT+1}, s59, 18432")
            a(f"buffer_store_dwordx4 v[{o}:{o+3}], v8, s[{SWS}:{SWS+3}], s{sT} offen sc1")
            a("s_mov_b64 exec, 0xffff")
            a(f"buffer_store_dwordx2 v[{o+4}:{o+5}], v8, s[{SWS}:{SWS+3}], s{sT+1} offen sc1")
            a("s_mov_b64 exec, -1")
        self.stamp('C', 7)
        a("s_barrier")
        self.phase2()

    def phi4(self, c, dst, t):
        a = self.a
        a(f"""
v_pk_mul_f32 v[{t}:{t+1}], v[{c}:{c+1}], s[{sLOG2E}:{sLOG2E+1}]
v_pk_mul_f32 v[{t+2}:{t+3}], v[{c+2}:{c+3}], s[{sLOG2E}:{sLOG2E+1}]
v_max_f32 v{c}, 0, v{c}
v_max_f32 v{c+1}, 0, v{c+1}
v_exp_f32_e64 v{t}, v{t} clamp
v_exp_f32_e64 v{t+1}, v{t+1} clamp
v_exp_f32_e64 v{t+2}, v{t+2} clamp
v_exp_f32_e64 v{t+3}, v{t+3} clamp
v_max_f32 v{c+2}, 0, v{c+2}
v_max_f32 v{c+3}, 0, v{c+3}
v_pk_add_f32 v[{c}:{c+1}], v[{c}:{c+1}], v[{t}:{t+1}]
v_pk_add_f32 v[{c+2}:{c+3}], v[{c+2}:{c+3}], v[{t+2}:{t+3}]
v_pk_add_f32 v[{c}:{c+1}], v[{c}:{c+1}], s[{sEPS}:{sEPS+1}]
v_pk_add_f32 v[{c+2}:{c+3}], v[{c+2}:{c+3}], s[{sEPS}:{sEPS+1}]
v_cvt_pk_bf16_f32 v{dst}, v{c}, v{c+1}
v_cvt_pk_bf16_f32 v{dst+1}, v{c+2}, v{c+3}
""")

    def phase2(self):
        a = self.a
        OF = 112
        a(f"""
s_lshl_b32 s{sT}, s{sMT}, 3
s_and_b32 s{sT+1}, s{sJ}, 1
s_lshl_b32 s{sT+1}, s{sT+1}, 2
s_add_u32 s{sT}, s{sT}, s{sT+1}
s_add_u32 s{sT}, s{sT}, s{sWAVE}      ; T
s_mov_b32 s56, s{sT}
s_mul_i32 s{sT}, s{sT}, 18432
s_add_u32 s{sT}, s{sT}, {OBUF_OFF}
v_lshlrev_b32 v8, 4, v1
""")
        a(f"""
v_and_b32 v2, 15, v1
v_lshrrev_b32 v3, 4, v1               ; g
v_lshrrev_b32 v4, 2, v2               ; r
v_and_b32 v5, 3, v1                   ; c4
v_lshlrev_b32 v6, 2, v3
v_add_u32 v6, v6, v4                  ; 4g + r
v_mul_u32_u24 v6, 160, v6
v_lshlrev_b32 v5, 3, v5
v_add_u32 v10, v6, v5                 ; vWOa
v_add_u32 v11, 46080, v10             ; vWOa + 8*5760
v_mul_u32_u24 v6, 72, v3
v_add_u32 v6, v6, v4
v_add_u32 v6, 32, v6
v_mul_u32_u24 v6, 160, v6
v_add_u32 v12, v6, v5                 ; vWOb
""")
        lp = a.newlabel("op"); lpd = a.newlabel("opd")
        a(f"s_mov_b32 s{sCNT}, 0")
        a.label(lp)
        a(f"s_mov_b32 s{sT+1}, s{sT}")
        for k in range(18):
            a(f"buffer_load_dwordx4 v[{OF+4*k}:{OF+4*k+3}], v8, s[{SWS}:{SWS+3}], s{sT+1} offen offset:{(k%4)*1024} sc1")
            if k % 4 == 3:
                a(f"s_add_u32 s{sT+1}, s{sT+1}, 4096")
        a("s_waitcnt vmcnt(0)")
        a(f"v_max3_u32 v9, v{OF}, v{OF+1}, v{OF+2}")
        for k in range(OF + 3, OF + 71, 2):
            a(f"v_max3_u32 v9, v9, v{k}, v{k+1}")
        a(f"v_max_u32 v9, v9, v{OF+71}")
        a(f"""
v_cmp_eq_u32 vcc, -1, v9
s_cbranch_vccz {lpd}
s_add_u32 s{sCNT}, s{sCNT}, 1
s_cmp_gt_u32 s{sCNT}, {POLL_MAX}
s_cbranch_scc1 {lpd}
s_sleep 2
s_branch {lp}
{lpd}:
""")
        self.stamp('C', 8)
        AC = 16
        for r in range(AC, AC + 20):
            a(f"v_mov_b32 v{r}, 0")
        WP, WQ_ = 40, 60
        def wreads(k, buf):
            r = []
            for t in range(5):
                for hf in range(2):
                    b = buf + 4 * t + 2 * hf
                    if k < 16:
                        reg = 10 if k < 8 else 11
                        off = (k % 8) * 5760 + hf * 2560 + 32 * t
                    else:
                        reg = 12
                        off = (k - 16) * 46080 + hf * 5760 + 32 * t
                    r.append(f"ds_read_b64_tr_b16 v[{b}:{b+1}], v{reg} offset:{off}")
            return r
        for r in wreads(0, WP): a(r)
        for k in range(18):
            buf = WP if k % 2 == 0 else WQ_
            nb = WQ_ if k % 2 == 0 else WP
            nxt = wreads(k + 1, nb) if k < 17 else []
            a("s_waitcnt lgkmcnt(0)")
            for t in range(5):
                c = AC + 4 * t; b = buf + 4 * t; o = OF + 4 * k
                a(f"v_mfma_f32_16x16x32_bf16 v[{c}:{c+3}], v[{b}:{b+3}], v[{o}:{o+3}], v[{c}:{c+3}]")
                for _ in range(2):
                    if nxt: a(nxt.pop(0))
        a.nop(10)
        a(f"""
s_lshl_b32 s{sT}, s56, 4              ; row0 = T*16
s_mul_i32 s{sT}, s{sT}, 1152
s_lshr_b32 s{sT+1}, s{sJ}, 1
s_mul_i32 s{sT+1}, s{sT+1}, 144
s_add_u32 s{sT}, s{sT}, s{sT+1}
v_mul_u32_u24 v4, 1152, v2
v_lshlrev_b32 v5, 3, v3
v_add_u32 v4, v4, v5
""")
        for t in range(5):
            c = AC + 4 * t
            a(f"v_cvt_pk_bf16_f32 v{40+2*t}, v{c}, v{c+1}\nv_cvt_pk_bf16_f32 v{41+2*t}, v{c+2}, v{c+3}")
        for t in range(5):
            if t == 4:
                a("s_mov_b32 exec_lo, -1\ns_mov_b32 exec_hi, 0")
            a(f"buffer_store_dwordx2 v[{40+2*t}:{41+2*t}], v4, s[{SOUT}:{SOUT+3}], s{sT} offen offset:{32*t}")
        a("s_mov_b64 exec, -1")
        self.stamp('C', 9)
        a(f"""
s_or_b32 s{sT}, s{sMT}, s{sJ}
s_or_b32 s{sT}, s{sT}, s{sWAVE}
s_cmp_lg_u32 s{sT}, 0
s_cbranch_scc1 L_noepoch
s_add_u32 s{sT}, s{sEPOCH}, 1
v_mov_b32 v4, s{sT}
v_mov_b32 v5, {EPOCH_OFF}
s_mov_b64 exec, 1
buffer_store_dword v4, v5, s[{SWS}:{SWS+3}], 0 offen sc1
s_mov_b64 exec, -1
L_noepoch:
""")
        self.stamp_flush(10)
        a("s_waitcnt vmcnt(0)")
        a("s_endpgm")

    def dump_regs(self, base, n, off):
        a = self.a
        a(f"""
s_lshl_b32 s{sT}, s2, 2
s_add_u32 s{sT}, s{sT}, s{sWAVE}
s_mul_i32 s{sT}, s{sT}, {n*256}
s_add_u32 s{sT}, s{sT}, {off}
v_lshlrev_b32 v2, 2, v1
""")
        for r in range(n):
            a(f"buffer_store_dword v{base+r}, v2, s[{SWS}:{SWS+3}], s{sT} offen")
            a(f"s_add_u32 s{sT}, s{sT}, 256")
        a("s_waitcnt vmcnt(0)")

    def build(self):
        self.prologue()
        self.compute()
        for wp in range(4):
            self.loader(wp)
        self.a.label("L_end")
        self.a("s_endpgm")
        hdr = f"""; fused linear attention block: x@wqkv -> phi -> kv/z reduce -> o -> @wo, one launch
; @launch grid=(256,1,1) block=(512,1,1) lds={LDS_BYTES}
"""
        return hdr + TARGET + head(NAME) + self.a.text() + desc(NAME, vgpr=256, sgpr=96)

if __name__ == '__main__':
    dump = None; stamps = False; out = 'k1.s'
    for arg in sys.argv[1:]:
        if arg.startswith('dump='): dump = arg[5:]
        elif arg == 'stamps': stamps = True
        elif arg.startswith('out='): out = arg[4:]
    open(out, 'w').write(K(dump, stamps).build())
```
